```python
import torch

def _softmax(x, axis=-1):
    return torch.softmax(x, dim=axis)
def _gelu(x):
    return torch.nn.functional.gelu(x, approximate="tanh")
def _silu(x):
    return torch.nn.functional.silu(x)
def _sigmoid(x):
    return torch.sigmoid(x)
def _layernorm(x, axis=-1, eps=1e-5):
    m = x.mean(dim=axis, keepdim=True)
    v = x.var(dim=axis, keepdim=True, unbiased=False)
    return (x - m) / torch.sqrt(v + eps)
def _scatter_add(tgt, idx, src, axis=0):
    return tgt.clone().index_add_(axis, idx, src)
def _segment_sum(src, seg, n):
    out = torch.zeros((n,) + src.shape[1:], dtype=src.dtype)
    return out.index_add_(0, seg, src)
def _pad(x, pw):
    flat = tuple(v for pair in reversed(pw) for v in pair)
    return torch.nn.functional.pad(x, flat)

kernel_name = 'gated_mix__ssm_conv_h3__compressed_kv_cla__prompt'

def setup_inputs():

    _w = (lambda a: (lambda t: t.to(torch.bfloat16) if t.is_floating_point() else t)(torch.as_tensor(a)))
    def _A_setup():
        B, S, D = 1, 2048, 1024
        ks = 4
        return {
            "q": _w((lambda *s: torch.randn(*s, dtype=torch.bfloat16) * 0.05)(B, S, D)),
            "k": _w((lambda *s: torch.randn(*s, dtype=torch.bfloat16) * 0.4)(B, S, D)),
            "v": _w((lambda *s: torch.randn(*s, dtype=torch.bfloat16) * 0.4)(B, S, D)),
            "shift_k": _w((lambda *s: torch.randn(*s, dtype=torch.bfloat16) * 0.4)(D, ks) * 0.5),
            "ssm_k": _w((lambda *s: torch.randn(*s, dtype=torch.bfloat16) * 0.8)(D, S) * (1.0 / S ** 0.5)),
            "ssm_D": _w((lambda *s: torch.randn(*s, dtype=torch.bfloat16) * 0.4)(D)),
        }
    _A_in = _A_setup()

    def _B_setup():
        B, H, Sq, Sk, D, M = 1, 32, 2048, 2048, 128, 1024
        Dc = 4 * D
        return {
            "x": _w((lambda *s: torch.randn(*s, dtype=torch.bfloat16) * 0.05)(B, Sq, M)),
            "c_kv": _w((lambda *s: torch.randn(*s, dtype=torch.bfloat16) * 0.4)(B, Sk, Dc)),
            "w_q": _w((lambda *s: torch.randn(*s, dtype=torch.bfloat16) * 6.4)(M, H, D) * (M ** -0.5)),
            "w_uk": _w((lambda *s: torch.randn(*s, dtype=torch.bfloat16) * 6.4)(Dc, H, D) * (Dc ** -0.5)),
            "w_uv": _w((lambda *s: torch.randn(*s, dtype=torch.bfloat16) * 0.4)(Dc, H, D) * (Dc ** -0.5)),
            "w_o": _w((lambda *s: torch.randn(*s, dtype=torch.bfloat16) * 0.4)(H, D, M) * ((H * D) ** -0.5)),
        }
    _B_in = _B_setup()

    return {
        "A_q": _A_in["q"],
        "A_k": _A_in["k"],
        "A_v": _A_in["v"],
        "A_shift_k": _A_in["shift_k"],
        "A_ssm_k": _A_in["ssm_k"],
        "A_ssm_D": _A_in["ssm_D"],
        "B_x": _B_in["x"],
        "B_c_kv": _B_in["c_kv"],
        "B_w_q": _B_in["w_q"],
        "B_w_uk": _B_in["w_uk"],
        "B_w_uv": _B_in["w_uv"],
        "B_w_o": _B_in["w_o"],
        "gate_w": _w((lambda *s: torch.randn(*s, dtype=torch.bfloat16) * 0.05)(1024) * 16.0),
    }

def reference(A_q, A_k, A_v, A_shift_k, A_ssm_k, A_ssm_D, B_x, B_c_kv, B_w_q, B_w_uk, B_w_uv, B_w_o, gate_w):
    def _A_ref(q, k, v, shift_k, ssm_k, ssm_D):
        B, S, D = q.shape
        ks = shift_k.shape[-1]
        k_pad = _pad(k, ((0, 0), (ks - 1, 0), (0, 0)))
        k_shift = torch.zeros_like(k)
        for t in range(ks):
            k_shift = k_shift + k_pad[:, t:t + S, :] * shift_k[:, ks - 1 - t][None, None, :]
        kv = k_shift * v
        L = 2 * S
        kv_pad = _pad(kv, ((0, 0), (0, S), (0, 0)))
        kf_pad = _pad(ssm_k, ((0, 0), (0, S)))
        kv_f = (lambda x, axes=(-2,-1): torch.fft.rfft2(x.float(), dim=axes))(kv_pad[:, None, :, :], axes=(1, 2))
        kf_f = (lambda x, axes=(-2,-1): torch.fft.rfft2(x.float(), dim=axes))(kf_pad[:, None, :], axes=(1, 2))
        kf_f = (lambda x, *d: x.permute(*d))(kf_f, 1, 2, 0)
        y_f = kv_f * kf_f[None, :, :, :]
        y = (lambda x, s, axes=(-2,-1): torch.fft.irfft2(x, s=s, dim=axes).to(torch.bfloat16))(y_f, (1, L), axes=(1, 2))[:, 0, :S, :]
        y = y + kv * ssm_D[None, None, :]
        return q * y

    def _B_ref(x, c_kv, w_q, w_uk, w_uv, w_o):
        B, Sq, M = x.shape[0], x.shape[1], x.shape[2]
        Sk = c_kv.shape[1]
        H, D = w_q.shape[1], w_q.shape[2]
        q = torch.einsum("bqm,mhd->bhqd", x, w_q)
        k = torch.einsum("bkc,chd->bhkd", c_kv, w_uk)
        v = torch.einsum("bkc,chd->bhkd", c_kv, w_uv)
        scores = torch.einsum("bhqd,bhkd->bhqk", q, k) * (D ** -0.5)
        off = Sk - Sq
        qi = torch.arange(Sq)[:, None]
        kj = torch.arange(Sk)[None, :]
        cmask = kj <= (qi + off)
        scores = torch.where(cmask[None, None], scores, -1e9)
        p = _softmax(scores, axis=-1)
        ctx = torch.einsum("bhqk,bhkd->bhqd", p, v)
        return torch.einsum("bhqd,hdm->bqm", ctx, w_o)

    x = A_q
    g = _sigmoid((x * gate_w).sum(-1, keepdims=True))
    a = _A_ref(x, A_k, A_v, A_shift_k, A_ssm_k, A_ssm_D)
    b = _B_ref(x, B_c_kv, B_w_q, B_w_uk, B_w_uv, B_w_o)
    return g * a + (1 - g) * b
```

```python
import re

class Prog:
    def __init__(self):
        self.L = []
    def e(self, s):
        for line in s.split("\n"):
            line = line.strip()
            if line: self.L.append(line)
    def ext(self, items):
        for s in items: self.e(s)
    def label(self, n): self.L.append(n + ":")
    def text(self):
        out = []
        for l in self.L:
            if l.endswith(":") or l.startswith("."): out.append(l)
            else: out.append("    " + l)
        return "\n".join(out) + "\n"

def vr(b, n=1, k='v'):
    return f"{k}{b}" if n == 1 else f"{k}[{b}:{b+n-1}]"
def ar(b, n=1): return vr(b, n, 'a')
def sr(b, n=1): return vr(b, n, 's')

def weave(p, mfmas, gaps):
    assert len(mfmas) == len(gaps), (len(mfmas), len(gaps))
    for m, g in zip(mfmas, gaps):
        p.e(m)
        for f in g: p.e(f)

_REG = re.compile(r"^(-|abs\()?([vas])(\d+)\)?$|^(-|abs\()?([vas])\[(\d+):(\d+)\]\)?$")
def regs_of(op):
    op = op.strip()
    if op in ("vcc", "exec"): return {(op, 0), (op, 1)}
    if op in ("vcc_lo", "exec_lo"): return {(op[:-3], 0)}
    if op in ("vcc_hi", "exec_hi"): return {(op[:-3], 1)}
    if op == "m0": return {("m0", 0)}
    m = _REG.match(op)
    if not m: return set()
    if m.group(2): return {(m.group(2), int(m.group(3)))}
    return {(m.group(5), i) for i in range(int(m.group(6)), int(m.group(7))+1)}

TRANS = ("v_exp_f32", "v_log_f32", "v_rcp_f32", "v_rsq_f32", "v_sqrt_f32", "v_sin_f32", "v_cos_f32")
class Ins:
    __slots__ = ("txt", "op", "w", "r", "kind", "srcC", "passes", "states", "vm", "lg", "target", "cond", "dpp", "data")
    def __init__(self, txt):
        self.txt = txt
        t = txt.split(";")[0].strip()
        parts = t.split(None, 1)
        self.op = op = parts[0]
        rest = parts[1] if len(parts) > 1 else ""
        ops = [o.strip() for o in re.split(r",(?![^\[]*\])", rest)] if rest else []
        mods = ""
        if ops:
            sp = ops[-1].split(None, 1)
            ops[-1] = sp[0]; mods = sp[1] if len(sp) > 1 else ""
        R = lambda i: regs_of(ops[i]) if i < len(ops) else set()
        allr = lambda a: set().union(*[R(i) for i in range(a, len(ops))]) if len(ops) > a else set()
        self.w, self.r = set(), set()
        self.srcC = set(); self.passes = 0; self.states = 1; self.vm = None; self.lg = None
        self.target = None; self.cond = False; self.dpp = False; self.data = set()
        if op.startswith("v_mfma"):
            self.kind = "mfma"; self.w = R(0); self.r = allr(1); self.srcC = R(3)
            self.passes = 4 if "16x16x32" in op else 8
        elif op.startswith("ds_read"):
            self.kind = "ds"; self.w = R(0); self.r = allr(1)
        elif op.startswith("ds_write"):
            self.kind = "ds"; self.r = allr(0)
        elif op.startswith(("ds_bpermute", "ds_permute", "ds_swizzle")):
            self.kind = "ds"; self.w = R(0); self.r = allr(1)
        elif op.startswith(("buffer_load", "global_load")):
            self.kind = "vmem"
            if re.search(r"\blds\b", mods) or "_lds_" in op:
                self.r = allr(0) | {("m0", 0)}; self.kind = "vmem_lds"
            else: self.w = R(0); self.r = allr(1)
        elif op.startswith(("buffer_store", "global_store")):
            self.kind = "vmem"; self.r = allr(0)
            if "x4" in op or "x3" in op: self.data = R(0) if op.startswith("buffer") else R(1)
        elif op.startswith(("buffer_atomic", "global_atomic")):
            self.kind = "vmem"; self.r = allr(0)
            if "sc0" in mods: self.w = R(0)
        elif op.startswith(("buffer_wbl2", "buffer_inv")):
            self.kind = "vmem"
        elif op.startswith(("s_load", "s_memtime", "s_memrealtime")):
            self.kind = "smem"; self.w = R(0); self.r = allr(1)
        elif op == "s_waitcnt":
            self.kind = "wait"
            m = re.search(r"vmcnt\((\d+)\)", t); self.vm = int(m.group(1)) if m else None
            m = re.search(r"lgkmcnt\((\d+)\)", t); self.lg = int(m.group(1)) if m else None
        elif op == "s_nop":
            self.kind = "nop"; self.states = int(ops[0]) + 1
        elif op in ("s_branch",) or op.startswith("s_cbranch"):
            self.kind = "branch"; self.target = ops[0]; self.cond = op != "s_branch"
            if "vcc" in op: self.r = {("vcc", 0), ("vcc", 1)}
            if "exec" in op: self.r = {("exec", 0), ("exec", 1)}
        elif op in ("s_endpgm", "s_barrier", "s_setprio", "s_sleep"):
            self.kind = "salu"
        elif op.startswith("s_cmp"):
            self.kind = "salu"; self.r = allr(0)
        elif op.startswith("s_"):
            self.kind = "salu"; self.w = R(0); self.r = allr(1)
            if "saveexec" in op: self.w |= {("exec", 0), ("exec", 1)}
            if op in ("s_addk_i32", "s_mulk_i32"): self.r |= R(0)
        elif op.startswith("v_"):
            self.kind = "valu"
            self.w = R(0); self.r = allr(1)
            if op.startswith(("v_add_co", "v_sub_co", "v_addc_co", "v_subb_co", "v_subrev_co")):
                self.w |= R(1); self.r = allr(2)
            if "permlane" in op and "swap" in op: self.w = R(0) | R(1); self.r = R(0) | R(1)
            if op.startswith(("v_fmac", "v_pk_fmac", "v_writelane", "v_dot2c")): self.r |= R(0)
            if op.startswith("v_cmpx"): self.w |= {("exec", 0), ("exec", 1)}
            if "row_" in mods or "quad_perm" in mods or "wave_" in mods:
                self.dpp = True; self.r |= R(0)
        else:
            raise ValueError("unknown instruction: " + txt)

def check(lines, name=""):
    ins, lab = [], {}
    for l in lines:
        if l.startswith(".") or l.startswith(";"): continue
        if l.endswith(":"): lab[l[:-1]] = len(ins); continue
        ins.append(Ins(l))
    n = len(ins)
    def succ(i):
        I = ins[i]
        if I.op == "s_endpgm": return []
        if I.kind == "branch":
            t = lab[I.target]
            return [t, i+1] if I.cond else [t]
        return [i+1] if i+1 < n else []
    probs = []
    isv = lambda s: {x for x in s if x[0] in "va" and len(x[0]) == 1}
    iss = lambda s: {x for x in s if x[0] in ("s", "vcc", "exec")}
    def need(P, C):
        k = 0
        if P.kind == "valu":
            wv, ws = isv(P.w), iss(P.w)
            if C.kind == "mfma" and wv & C.r: k = max(k, 2)
            if C.kind == "valu":
                if C.dpp and wv & C.r: k = max(k, 2)
                if "permlane" in C.op and wv & C.r: k = max(k, 2)
                if C.op.startswith(("v_readlane", "v_readfirstlane")) and wv & C.r: k = max(k, 1)
                if P.op in TRANS and wv & C.r: k = max(k, 1)
                if ws & C.r: k = max(k, 4 if C.op.startswith(("v_readlane", "v_writelane")) else 2)
                if ("exec", 0) in P.w and C.dpp: k = max(k, 5)
            if C.kind in ("vmem", "vmem_lds") and ws & C.r: k = max(k, 5)
            if C.kind == "mfma" and ("exec", 0) in P.w: k = max(k, 4)
        if P.kind == "salu" and ("m0", 0) in P.w and C.kind == "vmem_lds": k = max(k, 1)
        if P.kind == "vmem" and P.data and (P.data & C.w): k = max(k, 2 if C.kind == "valu" else 1)
        if P.kind == "mfma":
            big = {4: 8, 8: 12}[P.passes]; ovl = {4: 6, 8: 10}[P.passes]; war = {4: 3, 8: 7}[P.passes]
            if C.kind == "mfma":
                if P.w & (C.r - C.srcC) or (P.w & C.srcC & set()): k = max(k, big)
                ab = set()
                if P.w & C.srcC:
                    if not (P.w == C.srcC and P.passes == C.passes): k = max(k, ovl)
                if P.w & C.w and not (P.w & C.srcC): k = max(k, big)
            elif C.kind in ("valu", "ds", "vmem", "vmem_lds"):
                if P.w & (C.r | C.w): k = max(k, big)
                if C.kind == "valu" and (P.srcC & C.w): k = max(k, war)
        return k
    for i, P in enumerate(ins):
        if P.kind not in ("valu", "salu", "vmem", "mfma"): continue
        if not (P.w or P.data or P.srcC): continue
        stack = [(j, 0) for j in succ(i)]; seen = set()
        while stack:
            j, d = stack.pop()
            if (j, d) in seen or d >= 13: continue
            seen.add((j, d))
            C = ins[j]
            k = need(P, C)
            if k > d: probs.append(f"{name}: wait states {d} < {k}: [{i}] {P.txt}  ->  [{j}] {C.txt}")
            for s in succ(j): stack.append((s, d + C.states))
    for i, P in enumerate(ins):
        if not P.w or P.kind not in ("ds", "vmem", "smem"): continue
        cls = "vm" if P.kind == "vmem" else "lg"
        stack = [(j, 0, P.kind == "smem") for j in succ(i)]; seen = set()
        while stack:
            j, c, mixed = stack.pop()
            if (j, c, mixed) in seen: continue
            seen.add((j, c, mixed))
            C = ins[j]
            if C.kind == "wait":
                w = C.vm if cls == "vm" else C.lg
                if w is not None and (w == 0 or (w <= c and not mixed)): continue
            if (C.r | C.w) & P.w:
                same_inorder = (C.kind == P.kind and not (C.r & P.w) and P.kind != "smem")
                if not same_inorder:
                    probs.append(f"{name}: load not waited: [{i}] {P.txt}  ->  [{j}] {C.txt}")
                continue
            if cls == "vm" and C.kind in ("vmem", "vmem_lds"): c = min(c+1, 64)
            if cls == "lg" and C.kind == "ds": c = min(c+1, 16)
            if cls == "lg" and C.kind == "smem": mixed = True
            for s in succ(j): stack.append((s, c, mixed))
    return probs

def auto_lgkm(seq, pending=None, block=None, sentinel=None):
    q = [(set(d), -1) for d in (pending or [])]; out = []; last_mfma = -1
    for l in list(seq) + ([sentinel] if sentinel else []):
        if l.endswith(":") or l.startswith("."): out.append(l); continue
        if l.startswith("@wait"):
            want = regs_of(l.split()[1]); need = -1
            for k, (d, pos) in enumerate(q):
                if block(d) == block(want): need = k
            if need >= 0:
                out.append(f"s_waitcnt lgkmcnt({len(q)-1-need})"); q = q[need+1:]
            continue
        I = Ins(l)
        if I.kind == "wait" and I.lg is not None:
            q = q[max(0, len(q)-I.lg):] if I.lg else []
            out.append(l); continue
        touch = I.r | I.w
        need = -1
        for k, (d, pos) in enumerate(q):
            if d & touch and not (I.kind == "ds" and not (d & I.r)): need = k
        if need >= 0:
            if block:
                while need+1 < len(q) and block(q[need+1][0]) == block(q[need][0]): need += 1
            if last_mfma >= 0 and q[need][1] < last_mfma:
                n = sum(1 for (d, pos) in q[need+1:] if pos < last_mfma)
                out.insert(last_mfma+1, f"s_waitcnt lgkmcnt({n})")
                q = [(d, pos+1 if pos > last_mfma else pos) for (d, pos) in q]
            else:
                n = len(q) - 1 - need
                out.append(f"s_waitcnt lgkmcnt({n})")
            assert n <= 15
            q = q[need+1:]
        if I.kind == "ds": q.append((set(I.w), len(out)))
        assert I.kind != "smem", "smem inside auto_lgkm region"
        if I.kind == "mfma": last_mfma = len(out)
        out.append(l)
    if sentinel: out.pop()
    return out, [d for d, pos in q]
```

```python
from asmlib import *
KA = dict(q=0, k=8, v=16, shift=24, ssm=32, D=40, bx=48, ckv=56, wq=64, wuk=72, wuv=80, wo=88, gw=96, out=104, dbg=112, ws=120)
MB = 1 << 20
WS_KV, WS_KV_SZ = 0, 32*MB
WS_CTX, WS_CTX_SZ = 32*MB, 16*MB
UR_PITCH = 4608
WS_UR, WS_UR_SZ = 48*MB, 1024*UR_PITCH
WS_YT, WS_YT_SZ = 53*MB, 4*MB
WS_G, WS_G_SZ = 57*MB, 8192
WS_FLAG, WS_FLAG_SZ = 58*MB, 512*1024
WS_X, WS_X_SZ = 64*MB, 16*MB
WS_STAMP, WS_STAMP_SZ = 60*MB, 1*MB
MF = "v_mfma_f32_16x16x32_bf16"

def mfma(d, a, b, c=None):
    return f"{MF} {d}, {a}, {b}, {c if c is not None else d}"

def srd(p, dst, ptr, size, off=0):
    if off:
        p.e(f"s_add_u32 s{dst}, s{ptr}, {off}\ns_addc_u32 s{dst+1}, s{ptr+1}, 0")
    else:
        p.e(f"s_mov_b32 s{dst}, s{ptr}\ns_mov_b32 s{dst+1}, s{ptr+1}")
    p.e(f"s_mov_b32 s{dst+2}, {size}\ns_mov_b32 s{dst+3}, 0x00020000")

def kernel_head(p, name, nwg):
    p.e(f".p2align 8\n.type {name},@function")
    p.label(name)
    p.e(f"s_cmp_ge_u32 s2, {nwg}\ns_cbranch_scc1 {name}_end")

def kernel_tail(p, name):
    p.label(f"{name}_end")
    p.e("s_endpgm")

def descriptor(name, vgpr, accum, sgpr=102):
    return f""".amdhsa_kernel {name}
  .amdhsa_next_free_vgpr {vgpr}
  .amdhsa_next_free_sgpr {sgpr}
  .amdhsa_accum_offset {accum}
  .amdhsa_group_segment_fixed_size 0
  .amdhsa_kernarg_size 128
  .amdhsa_user_sgpr_count 2
  .amdhsa_user_sgpr_kernarg_segment_ptr 1
  .amdhsa_system_sgpr_workgroup_id_x 1
  .amdhsa_float_denorm_mode_32 3
.end_amdhsa_kernel
"""

class Stamps:
    def __init__(self, on, kidx):
        self.on, self.n, self.kidx = on, 0, kidx
    def stamp(self, p):
        if not self.on: return
        r = 80 + 2*self.n; assert r <= 98
        p.e(f"s_memtime s[{r}:{r+1}]\ns_waitcnt lgkmcnt(0)")
        self.n += 1
    def flush(self, p, wave_sgpr, vtmp):
        if not self.on: return
        p.e(f"s_memrealtime s[100:101]\ns_load_dwordx2 s[72:73], s[0:1], {KA['ws']}\ns_waitcnt lgkmcnt(0)")
        srd(p, 76, 72, WS_STAMP_SZ, WS_STAMP)
        p.e(f"v_mov_b32 v{vtmp}, 0")
        for k in range(self.n): p.e(f"v_writelane_b32 v{vtmp}, s{80+2*k}, {k}")
        p.e(f"v_writelane_b32 v{vtmp}, s100, 15")
        p.e(f"v_mbcnt_lo_u32_b32 v{vtmp+1}, -1, 0\nv_mbcnt_hi_u32_b32 v{vtmp+1}, -1, v{vtmp+1}\nv_lshlrev_b32 v{vtmp+1}, 2, v{vtmp+1}")
        p.e(f"s_lshl_b32 s74, s2, 2\ns_add_u32 s74, s74, s{wave_sgpr}\ns_lshl_b32 s74, s74, 6\ns_add_u32 s74, s74, {self.kidx*65536*2}")
        p.e(f"v_cmp_gt_u32 vcc, 64, v{vtmp+1}\ns_and_saveexec_b64 s[72:73], vcc")
        p.e(f"buffer_store_dword v{vtmp}, v{vtmp+1}, s[76:79], s74 offen\ns_waitcnt vmcnt(0)")

import struct, math
KSCALE = math.log2(math.e)/math.sqrt(128.0)
KSCALE_HEX = hex(struct.unpack("<I", struct.pack("<f", KSCALE))[0])
```

```python
import sys, os
sys.path.insert(0, os.path.dirname(__file__))
from common import *
import asmlib
REF = open('gated_mix__ssm_conv_h3__compressed_kv_cla__prompt.s.ref').read()
HEADER = [l for l in REF.split("\n") if l.startswith(";") and "@launch" not in l and "Override launch" not in l and "grid=ceil" not in l]

def build(kernels, path, check=True):
    out = list(HEADER)
    for name, p, kd, (g, b, lds) in kernels:
        if len(kernels) == 1 and name.startswith("gated_mix"): out.append(f"; @launch grid=({g},1,1) block=({b},1,1) lds={lds}")
        else: out.append(f"; @launch kernel={name} grid=({g},1,1) block=({b},1,1) lds={lds}")
    out.append('.amdgcn_target "amdgcn-amd-amdhsa--gfx950"\n.text')
    bad = 0
    for name, p, kd, _ in kernels:
        if check:
            pr = asmlib.check(p.L, name)
            for x in pr[:30]: print("CHECK", x)
            bad += len(pr)
        out.append(f".globl {name}")
        out.append(p.text())
    out.append('.section .rodata,"a"')
    for name, p, kd, _ in kernels:
        out.append(".p2align 6\n" + kd)
    open(path, "w").write("\n".join(out))
    print(f"wrote {path}: {len(kernels)} kernels, {bad} checker findings")
    return bad

if __name__ == "__main__":
    prof = "--prof" in sys.argv
    which = [a for a in sys.argv[1:] if not a.startswith("--")]
    import importlib
    ks = []
    for m in which[1:]:
        m, *ab = m.split(":")
        mod = importlib.import_module(m)
        ks.append(getattr(mod, "gen_" + m)(prof, ab) if ab else getattr(mod, "gen_" + m)(prof))
    build(ks, which[0], '--nocheck' not in sys.argv)
```

```python
import re

class Prog:
    def __init__(self):
        self.L = []
    def e(self, s):
        for line in s.split("\n"):
            line = line.strip()
            if line: self.L.append(line)
    def ext(self, items):
        for s in items: self.e(s)
    def label(self, n): self.L.append(n + ":")
    def text(self):
        out = []
        for l in self.L:
            if l.endswith(":") or l.startswith("."): out.append(l)
            else: out.append("    " + l)
        return "\n".join(out) + "\n"

def vr(b, n=1, k='v'):
    return f"{k}{b}" if n == 1 else f"{k}[{b}:{b+n-1}]"
def ar(b, n=1): return vr(b, n, 'a')
def sr(b, n=1): return vr(b, n, 's')

def weave(p, mfmas, gaps):
    assert len(mfmas) == len(gaps), (len(mfmas), len(gaps))
    for m, g in zip(mfmas, gaps):
        p.e(m)
        for f in g: p.e(f)

_REG = re.compile(r"^(-|abs\()?([vas])(\d+)\)?$|^(-|abs\()?([vas])\[(\d+):(\d+)\]\)?$")
def regs_of(op):
    op = op.strip()
    if op in ("vcc", "exec"): return {(op, 0), (op, 1)}
    if op in ("vcc_lo", "exec_lo"): return {(op[:-3], 0)}
    if op in ("vcc_hi", "exec_hi"): return {(op[:-3], 1)}
    if op == "m0": return {("m0", 0)}
    m = _REG.match(op)
    if not m: return set()
    if m.group(2): return {(m.group(2), int(m.group(3)))}
    return {(m.group(5), i) for i in range(int(m.group(6)), int(m.group(7))+1)}

TRANS = ("v_exp_f32", "v_log_f32", "v_rcp_f32", "v_rsq_f32", "v_sqrt_f32", "v_sin_f32", "v_cos_f32")
class Ins:
    __slots__ = ("txt", "op", "w", "r", "kind", "srcC", "passes", "states", "vm", "lg", "target", "cond", "dpp", "data")
    def __init__(self, txt):
        self.txt = txt
        t = txt.split(";")[0].strip()
        parts = t.split(None, 1)
        self.op = op = parts[0]
        rest = parts[1] if len(parts) > 1 else ""
        ops = [o.strip() for o in re.split(r",(?![^\[]*\])", rest)] if rest else []
        mods = ""
        if ops:
            sp = ops[-1].split(None, 1)
            ops[-1] = sp[0]; mods = sp[1] if len(sp) > 1 else ""
        R = lambda i: regs_of(ops[i]) if i < len(ops) else set()
        allr = lambda a: set().union(*[R(i) for i in range(a, len(ops))]) if len(ops) > a else set()
        self.w, self.r = set(), set()
        self.srcC = set(); self.passes = 0; self.states = 1; self.vm = None; self.lg = None
        self.target = None; self.cond = False; self.dpp = False; self.data = set()
        if op.startswith("v_mfma"):
            self.kind = "mfma"; self.w = R(0); self.r = allr(1); self.srcC = R(3)
            self.passes = 4 if "16x16x32" in op else 8
        elif op.startswith("ds_read"):
            self.kind = "ds"; self.w = R(0); self.r = allr(1)
        elif op.startswith("ds_write"):
            self.kind = "ds"; self.r = allr(0)
        elif op.startswith(("ds_bpermute", "ds_permute", "ds_swizzle")):
            self.kind = "ds"; self.w = R(0); self.r = allr(1)
        elif op.startswith(("buffer_load", "global_load")):
            self.kind = "vmem"
            if re.search(r"\blds\b", mods) or "_lds_" in op:
                self.r = allr(0) | {("m0", 0)}; self.kind = "vmem_lds"
            else: self.w = R(0); self.r = allr(1)
        elif op.startswith(("buffer_store", "global_store")):
            self.kind = "vmem"; self.r = allr(0)
            if "x4" in op or "x3" in op: self.data = R(0) if op.startswith("buffer") else R(1)
        elif op.startswith(("buffer_atomic", "global_atomic")):
            self.kind = "vmem"; self.r = allr(0)
            if "sc0" in mods: self.w = R(0)
        elif op.startswith(("buffer_wbl2", "buffer_inv")):
            self.kind = "vmem"
        elif op.startswith(("s_load", "s_memtime", "s_memrealtime")):
            self.kind = "smem"; self.w = R(0); self.r = allr(1)
        elif op == "s_waitcnt":
            self.kind = "wait"
            m = re.search(r"vmcnt\((\d+)\)", t); self.vm = int(m.group(1)) if m else None
            m = re.search(r"lgkmcnt\((\d+)\)", t); self.lg = int(m.group(1)) if m else None
        elif op == "s_nop":
            self.kind = "nop"; self.states = int(ops[0]) + 1
        elif op in ("s_branch",) or op.startswith("s_cbranch"):
            self.kind = "branch"; self.target = ops[0]; self.cond = op != "s_branch"
            if "vcc" in op: self.r = {("vcc", 0), ("vcc", 1)}
            if "exec" in op: self.r = {("exec", 0), ("exec", 1)}
        elif op in ("s_endpgm", "s_barrier", "s_setprio", "s_sleep"):
            self.kind = "salu"
        elif op.startswith("s_cmp"):
            self.kind = "salu"; self.r = allr(0)
        elif op.startswith("s_"):
            self.kind = "salu"; self.w = R(0); self.r = allr(1)
            if "saveexec" in op: self.w |= {("exec", 0), ("exec", 1)}
            if op in ("s_addk_i32", "s_mulk_i32"): self.r |= R(0)
        elif op.startswith("v_"):
            self.kind = "valu"
            self.w = R(0); self.r = allr(1)
            if op.startswith(("v_add_co", "v_sub_co", "v_addc_co", "v_subb_co", "v_subrev_co")):
                self.w |= R(1); self.r = allr(2)
            if "permlane" in op and "swap" in op: self.w = R(0) | R(1); self.r = R(0) | R(1)
            if op.startswith(("v_fmac", "v_pk_fmac", "v_writelane", "v_dot2c")): self.r |= R(0)
            if op.startswith("v_dot2_"): self.srcC = R(3)
            if op.startswith("v_cmpx"): self.w |= {("exec", 0), ("exec", 1)}
            if "row_" in mods or "quad_perm" in mods or "wave_" in mods:
                self.dpp = True; self.r |= R(0)
        else:
            raise ValueError("unknown instruction: " + txt)

def check(lines, name=""):
    ins, lab = [], {}
    for l in lines:
        if l.startswith(".") or l.startswith(";"): continue
        if l.endswith(":"): lab[l[:-1]] = len(ins); continue
        ins.append(Ins(l))
    n = len(ins)
    def succ(i):
        I = ins[i]
        if I.op == "s_endpgm": return []
        if I.kind == "branch":
            t = lab[I.target]
            return [t, i+1] if I.cond else [t]
        return [i+1] if i+1 < n else []
    probs = []
    isv = lambda s: {x for x in s if x[0] in "va" and len(x[0]) == 1}
    iss = lambda s: {x for x in s if x[0] in ("s", "vcc", "exec")}
    def need(P, C):
        k = 0
        if P.kind == "valu":
            wv, ws = isv(P.w), iss(P.w)
            if C.kind == "mfma" and wv & C.r: k = max(k, 2)
            if C.kind == "valu":
                if C.dpp and wv & C.r: k = max(k, 2)
                if "permlane" in C.op and wv & C.r: k = max(k, 2)
                if C.op.startswith(("v_readlane", "v_readfirstlane")) and wv & C.r: k = max(k, 1)
                if P.op in TRANS and wv & C.r: k = max(k, 1)
                if P.op.startswith("v_dot") and wv & (C.r | C.w) and not (C.op == P.op and not (wv & (C.r - C.srcC))): k = max(k, 3)
                if ws & C.r: k = max(k, 4 if C.op.startswith(("v_readlane", "v_writelane")) else 2)
                if ("exec", 0) in P.w and C.dpp: k = max(k, 5)
            if C.kind in ("vmem", "vmem_lds") and ws & C.r: k = max(k, 5)
            if P.op.startswith("v_dot") and C.kind != "valu" and wv & C.r: k = max(k, 3)
            if C.kind == "mfma" and ("exec", 0) in P.w: k = max(k, 4)
        if P.kind == "salu" and ("m0", 0) in P.w and C.kind == "vmem_lds": k = max(k, 1)
        if P.kind == "vmem" and P.data and (P.data & C.w): k = max(k, 2 if C.kind == "valu" else 1)
        if P.kind == "mfma":
            big = {4: 8, 8: 12}[P.passes]; ovl = {4: 6, 8: 10}[P.passes]; war = {4: 3, 8: 7}[P.passes]
            if C.kind == "mfma":
                if P.w & (C.r - C.srcC) or (P.w & C.srcC & set()): k = max(k, big)
                ab = set()
                if P.w & C.srcC:
                    if not (P.w == C.srcC and P.passes == C.passes): k = max(k, ovl)
                if P.w & C.w and not (P.w & C.srcC): k = max(k, big)
            elif C.kind in ("valu", "ds", "vmem", "vmem_lds"):
                if P.w & (C.r | C.w): k = max(k, big)
                if C.kind == "valu" and (P.srcC & C.w): k = max(k, war)
        return k
    for i, P in enumerate(ins):
        if P.kind not in ("valu", "salu", "vmem", "mfma"): continue
        if not (P.w or P.data or P.srcC): continue
        stack = [(j, 0) for j in succ(i)]; seen = set()
        while stack:
            j, d = stack.pop()
            if (j, d) in seen or d >= 13: continue
            seen.add((j, d))
            C = ins[j]
            k = need(P, C)
            if k > d: probs.append(f"{name}: wait states {d} < {k}: [{i}] {P.txt}  ->  [{j}] {C.txt}")
            for s in succ(j): stack.append((s, d + C.states))
    for i, P in enumerate(ins):
        if not P.w or P.kind not in ("ds", "vmem", "smem"): continue
        cls = "vm" if P.kind == "vmem" else "lg"
        stack = [(j, 0, P.kind == "smem") for j in succ(i)]; seen = set()
        while stack:
            j, c, mixed = stack.pop()
            if (j, c, mixed) in seen: continue
            seen.add((j, c, mixed))
            C = ins[j]
            if C.kind == "wait":
                w = C.vm if cls == "vm" else C.lg
                if w is not None and (w == 0 or (w <= c and not mixed)): continue
            if (C.r | C.w) & P.w:
                same_inorder = (C.kind == P.kind and not (C.r & P.w) and P.kind != "smem")
                if not same_inorder:
                    probs.append(f"{name}: load not waited: [{i}] {P.txt}  ->  [{j}] {C.txt}")
                continue
            if cls == "vm" and C.kind in ("vmem", "vmem_lds"): c = min(c+1, 64)
            if cls == "lg" and C.kind == "ds": c = min(c+1, 16)
            if cls == "lg" and C.kind == "smem": mixed = True
            for s in succ(j): stack.append((s, c, mixed))
    return probs

def auto_lgkm(seq, pending=None, block=None, sentinel=None):
    q = [(set(d), -1) for d in (pending or [])]; out = []; last_mfma = -1
    for l in list(seq) + ([sentinel] if sentinel else []):
        if l.endswith(":") or l.startswith("."): out.append(l); continue
        if l.startswith("@wait"):
            want = regs_of(l.split()[1]); need = -1
            for k, (d, pos) in enumerate(q):
                if block(d) == block(want): need = k
            if need >= 0:
                out.append(f"s_waitcnt lgkmcnt({len(q)-1-need})"); q = q[need+1:]
            continue
        I = Ins(l)
        if I.kind == "wait" and I.lg is not None:
            q = q[max(0, len(q)-I.lg):] if I.lg else []
            out.append(l); continue
        touch = I.r | I.w
        need = -1
        for k, (d, pos) in enumerate(q):
            if d & touch and not (I.kind == "ds" and not (d & I.r)): need = k
        if need >= 0:
            if block:
                while need+1 < len(q) and block(q[need+1][0]) == block(q[need][0]): need += 1
            if last_mfma >= 0 and q[need][1] < last_mfma:
                n = sum(1 for (d, pos) in q[need+1:] if pos < last_mfma)
                out.insert(last_mfma+1, f"s_waitcnt lgkmcnt({n})")
                q = [(d, pos+1 if pos > last_mfma else pos) for (d, pos) in q]
            else:
                n = len(q) - 1 - need
                out.append(f"s_waitcnt lgkmcnt({n})")
            assert n <= 15
            q = q[need+1:]
        if I.kind == "ds": q.append((set(I.w), len(out)))
        assert I.kind != "smem", "smem inside auto_lgkm region"
        if I.kind == "mfma": last_mfma = len(out)
        out.append(l)
    if sentinel: out.pop()
    return out, [d for d, pos in q]


def vm_tag(l):
    m = re.search(r";@(\S+)", l)
    return m.group(1) if m else None
def is_vmem(l): return l.startswith(("buffer_", "global_"))
def auto_vm(seq, queue):
    out = []
    for l in seq:
        if l.startswith("@vm"):
            body, _, rest = l[3:].partition("|")
            last = -1
            for t in body.split():
                idx = [k for k, x in enumerate(queue) if x == t]
                assert idx, f"tag {t} never issued"
                last = max(last, idx[-1])
            n = len(queue) - 1 - last
            w = (f"vmcnt({n}) " if n <= 62 else "vmcnt(62) ") + rest.strip()
            out.append("s_waitcnt " + w.strip())
            continue
        if is_vmem(l): queue.append(vm_tag(l))
        out.append(l)
    return out
```

```python
import re

class Prog:
    def __init__(self):
        self.L = []
    def e(self, s):
        for line in s.split("\n"):
            line = line.strip()
            if line: self.L.append(line)
    def ext(self, items):
        for s in items: self.e(s)
    def label(self, n): self.L.append(n + ":")
    def text(self):
        out = []
        for l in self.L:
            if l.endswith(":") or l.startswith("."): out.append(l)
            else: out.append(" " + l.split(" ;@")[0])
        return "\n".join(out) + "\n"

def vr(b, n=1, k='v'):
    return f"{k}{b}" if n == 1 else f"{k}[{b}:{b+n-1}]"
def ar(b, n=1): return vr(b, n, 'a')
def sr(b, n=1): return vr(b, n, 's')

def weave(p, mfmas, gaps):
    assert len(mfmas) == len(gaps), (len(mfmas), len(gaps))
    for m, g in zip(mfmas, gaps):
        p.e(m)
        for f in g: p.e(f)

_REG = re.compile(r"^(-|abs\()?([vas])(\d+)\)?$|^(-|abs\()?([vas])\[(\d+):(\d+)\]\)?$")
def regs_of(op):
    op = op.strip()
    if op in ("vcc", "exec"): return {(op, 0), (op, 1)}
    if op in ("vcc_lo", "exec_lo"): return {(op[:-3], 0)}
    if op in ("vcc_hi", "exec_hi"): return {(op[:-3], 1)}
    if op == "m0": return {("m0", 0)}
    m = _REG.match(op)
    if not m: return set()
    if m.group(2): return {(m.group(2), int(m.group(3)))}
    return {(m.group(5), i) for i in range(int(m.group(6)), int(m.group(7))+1)}

TRANS = ("v_exp_f32", "v_log_f32", "v_rcp_f32", "v_rsq_f32", "v_sqrt_f32", "v_sin_f32", "v_cos_f32")
class Ins:
    __slots__ = ("txt", "op", "w", "r", "kind", "srcC", "passes", "states", "vm", "lg", "target", "cond", "dpp", "data")
    def __init__(self, txt):
        self.txt = txt
        t = txt.split(";")[0].strip()
        parts = t.split(None, 1)
        self.op = op = parts[0]
        rest = parts[1] if len(parts) > 1 else ""
        ops = [o.strip() for o in re.split(r",(?![^\[]*\])", rest)] if rest else []
        mods = ""
        if ops:
            sp = ops[-1].split(None, 1)
            ops[-1] = sp[0]; mods = sp[1] if len(sp) > 1 else ""
        R = lambda i: regs_of(ops[i]) if i < len(ops) else set()
        allr = lambda a: set().union(*[R(i) for i in range(a, len(ops))]) if len(ops) > a else set()
        self.w, self.r = set(), set()
        self.srcC = set(); self.passes = 0; self.states = 1; self.vm = None; self.lg = None
        self.target = None; self.cond = False; self.dpp = False; self.data = set()
        if "@pad" in txt:
            self.kind = "salu"
        elif op.startswith("v_mfma"):
            self.kind = "mfma"; self.w = R(0); self.r = allr(1); self.srcC = R(3)
            self.passes = 4 if "16x16x32" in op else 8
        elif op.startswith("ds_read"):
            self.kind = "ds"; self.w = R(0); self.r = allr(1)
        elif op.startswith("ds_write"):
            self.kind = "ds"; self.r = allr(0)
        elif op.startswith(("ds_bpermute", "ds_permute", "ds_swizzle")):
            self.kind = "ds"; self.w = R(0); self.r = allr(1)
        elif op.startswith(("buffer_load", "global_load")):
            self.kind = "vmem"
            if re.search(r"\blds\b", mods) or "_lds_" in op:
                self.r = allr(0) | {("m0", 0)}; self.kind = "vmem_lds"
            else: self.w = R(0); self.r = allr(1)
        elif op.startswith(("buffer_store", "global_store")):
            self.kind = "vmem"; self.r = allr(0)
            if "x4" in op or "x3" in op: self.data = R(0) if op.startswith("buffer") else R(1)
        elif op.startswith(("buffer_atomic", "global_atomic")):
            self.kind = "vmem"; self.r = allr(0)
            if "sc0" in mods: self.w = R(0)
        elif op.startswith(("buffer_wbl2", "buffer_inv")):
            self.kind = "vmem"
        elif op.startswith(("s_load", "s_memtime", "s_memrealtime")):
            self.kind = "smem"; self.w = R(0); self.r = allr(1)
        elif op == "s_waitcnt":
            self.kind = "wait"
            m = re.search(r"vmcnt\((\d+)\)", t); self.vm = int(m.group(1)) if m else None
            m = re.search(r"lgkmcnt\((\d+)\)", t); self.lg = int(m.group(1)) if m else None
        elif op == "s_nop":
            self.kind = "nop"; self.states = int(ops[0]) + 1
        elif op in ("s_branch",) or op.startswith("s_cbranch"):
            self.kind = "branch"; self.target = ops[0]; self.cond = op != "s_branch"
            if "vcc" in op: self.r = {("vcc", 0), ("vcc", 1)}
            if "exec" in op: self.r = {("exec", 0), ("exec", 1)}
        elif op in ("s_endpgm", "s_barrier", "s_setprio", "s_sleep"):
            self.kind = "salu"
        elif op.startswith(("s_cmp", "s_bitcmp")):
            self.kind = "salu"; self.r = allr(0)
        elif op.startswith("s_"):
            self.kind = "salu"; self.w = R(0); self.r = allr(1)
            if "saveexec" in op: self.w |= {("exec", 0), ("exec", 1)}
            if op in ("s_addk_i32", "s_mulk_i32"): self.r |= R(0)
        elif op.startswith("v_"):
            self.kind = "valu"
            self.w = R(0); self.r = allr(1)
            if op.startswith(("v_add_co", "v_sub_co", "v_addc_co", "v_subb_co", "v_subrev_co")):
                self.w |= R(1); self.r = allr(2)
            if "permlane" in op and "swap" in op: self.w = R(0) | R(1); self.r = R(0) | R(1)
            if op.startswith(("v_fmac", "v_pk_fmac", "v_writelane", "v_dot2c")): self.r |= R(0)
            if op.startswith("v_dot2_"): self.srcC = R(3)
            if op.startswith("v_cmpx"): self.w |= {("exec", 0), ("exec", 1)}
            if "row_" in mods or "quad_perm" in mods or "wave_" in mods:
                self.dpp = True; self.r |= R(0)
        else:
            raise ValueError("unknown instruction: " + txt)

def check(lines, name=""):
    ins, lab = [], {}
    for l in lines:
        if l.startswith(".") or l.startswith(";"): continue
        if l.endswith(":"): lab[l[:-1]] = len(ins); continue
        ins.append(Ins(l))
    n = len(ins)
    def succ(i):
        I = ins[i]
        if I.op == "s_endpgm": return []
        if I.kind == "branch":
            t = lab[I.target]
            return [t, i+1] if I.cond else [t]
        return [i+1] if i+1 < n else []
    probs = []
    isv = lambda s: {x for x in s if x[0] in "va" and len(x[0]) == 1}
    iss = lambda s: {x for x in s if x[0] in ("s", "vcc", "exec")}
    def need(P, C):
        k = 0
        if P.kind == "valu":
            wv, ws = isv(P.w), iss(P.w)
            if C.kind == "mfma" and wv & C.r: k = max(k, 2)
            if C.kind == "valu":
                if C.dpp and wv & C.r: k = max(k, 2)
                if "permlane" in C.op and wv & C.r: k = max(k, 2)
                if C.op.startswith(("v_readlane", "v_readfirstlane")) and wv & C.r: k = max(k, 1)
                if P.op in TRANS and wv & C.r: k = max(k, 1)
                if P.op.startswith("v_dot") and wv & (C.r | C.w) and not (C.op == P.op and not (wv & (C.r - C.srcC))): k = max(k, 3)
                if ws & C.r: k = max(k, 4 if C.op.startswith(("v_readlane", "v_writelane")) else 2)
                if ("exec", 0) in P.w and C.dpp: k = max(k, 5)
            if C.kind in ("vmem", "vmem_lds") and ws & C.r: k = max(k, 5)
            if P.op.startswith("v_dot") and C.kind != "valu" and wv & C.r: k = max(k, 3)
            if C.kind == "mfma" and ("exec", 0) in P.w: k = max(k, 4)
        if P.kind == "salu" and ("m0", 0) in P.w and C.kind == "vmem_lds": k = max(k, 1)
        if P.kind == "vmem" and P.data and (P.data & C.w): k = max(k, 2 if C.kind == "valu" else 1)
        if P.kind == "mfma":
            big = {4: 8, 8: 12}[P.passes]; ovl = {4: 6, 8: 10}[P.passes]; war = {4: 3, 8: 7}[P.passes]
            if C.kind == "mfma":
                if P.w & (C.r - C.srcC) or (P.w & C.srcC & set()): k = max(k, big)
                ab = set()
                if P.w & C.srcC:
                    if not (P.w == C.srcC and P.passes == C.passes): k = max(k, ovl)
                if P.w & C.w and not (P.w & C.srcC): k = max(k, big)
            elif C.kind in ("valu", "ds", "vmem", "vmem_lds"):
                if P.w & (C.r | C.w): k = max(k, big)
                if C.kind == "valu" and (P.srcC & C.w): k = max(k, war)
        return k
    for i, P in enumerate(ins):
        if P.kind not in ("valu", "salu", "vmem", "mfma"): continue
        if not (P.w or P.data or P.srcC): continue
        stack = [(j, 0) for j in succ(i)]; seen = set()
        while stack:
            j, d = stack.pop()
            if (j, d) in seen or d >= 13: continue
            seen.add((j, d))
            C = ins[j]
            k = need(P, C)
            if k > d: probs.append(f"{name}: wait states {d} < {k}: [{i}] {P.txt}  ->  [{j}] {C.txt}")
            for s in succ(j): stack.append((s, d + C.states))
    for i, P in enumerate(ins):
        if not P.w or P.kind not in ("ds", "vmem", "smem"): continue
        cls = "vm" if P.kind == "vmem" else "lg"
        stack = [(j, 0, P.kind == "smem") for j in succ(i)]; seen = set()
        while stack:
            j, c, mixed = stack.pop()
            if (j, c, mixed) in seen: continue
            seen.add((j, c, mixed))
            C = ins[j]
            if C.kind == "wait":
                w = C.vm if cls == "vm" else C.lg
                if w is not None and (w == 0 or (w <= c and not mixed)): continue
            if (C.r | C.w) & P.w:
                same_inorder = (C.kind == P.kind and not (C.r & P.w) and P.kind != "smem")
                if not same_inorder:
                    probs.append(f"{name}: load not waited: [{i}] {P.txt}  ->  [{j}] {C.txt}")
                continue
            if cls == "vm" and C.kind in ("vmem", "vmem_lds"): c = min(c+1, 64)
            if cls == "lg" and C.kind == "ds": c = min(c+1, 16)
            if cls == "lg" and C.kind == "smem": mixed = True
            for s in succ(j): stack.append((s, c, mixed))
    return probs

def auto_lgkm(seq, pending=None, block=None, sentinel=None):
    q = [(set(d), -1) for d in (pending or [])]; out = []; last_mfma = -1
    for l in list(seq) + ([sentinel] if sentinel else []):
        if l.endswith(":") or l.startswith("."): out.append(l); continue
        if l.startswith("@wait"):
            want = regs_of(l.split()[1]); need = -1
            for k, (d, pos) in enumerate(q):
                if block(d) == block(want): need = k
            if need >= 0:
                out.append(f"s_waitcnt lgkmcnt({len(q)-1-need})"); q = q[need+1:]
            continue
        I = Ins(l)
        if I.kind == "wait" and I.lg is not None:
            q = q[max(0, len(q)-I.lg):] if I.lg else []
            out.append(l); continue
        touch = I.r | I.w
        need = -1
        for k, (d, pos) in enumerate(q):
            if d & touch and not (I.kind == "ds" and not (d & I.r)): need = k
        if need >= 0:
            if block:
                while need+1 < len(q) and block(q[need+1][0]) == block(q[need][0]): need += 1
            if last_mfma >= 0 and q[need][1] < last_mfma:
                n = sum(1 for (d, pos) in q[need+1:] if pos < last_mfma)
                out.insert(last_mfma+1, f"s_waitcnt lgkmcnt({n})")
                q = [(d, pos+1 if pos > last_mfma else pos) for (d, pos) in q]
            else:
                n = len(q) - 1 - need
                out.append(f"s_waitcnt lgkmcnt({n})")
            assert n <= 15
            q = q[need+1:]
        if I.kind == "ds": q.append((set(I.w), len(out)))
        assert I.kind != "smem", "smem inside auto_lgkm region"
        if I.kind == "mfma": last_mfma = len(out)
        out.append(l)
    if sentinel: out.pop()
    return out, [d for d, pos in q]


def vm_tag(l):
    m = re.search(r";@(\S+)", l)
    return m.group(1) if m else None
def is_vmem(l): return l.startswith(("buffer_", "global_"))
def auto_vm(seq, queue):
    out = []
    for l in seq:
        if l.startswith("@vm"):
            body, _, rest = l[3:].partition("|")
            last = -1
            for t in body.split():
                idx = [k for k, x in enumerate(queue) if x == t]
                assert idx, f"tag {t} never issued"
                last = max(last, idx[-1])
            n = len(queue) - 1 - last
            w = (f"vmcnt({n}) " if n <= 62 else "vmcnt(62) ") + rest.strip()
            out.append("s_waitcnt " + w.strip())
            continue
        if is_vmem(l): queue.append(vm_tag(l))
        out.append(l)
    return out


def sizes_of(lines, tmp="_sz"):
    import subprocess, os
    tmp += str(os.getpid())
    body = [l for l in lines if not l.startswith(".")]
    open(tmp + ".s", "w").write('.amdgcn_target "amdgcn-amd-amdhsa--gfx950"\n.text\n' + "\n".join(body) + "\n")
    subprocess.run(["clang", "-x", "assembler", "-target", "amdgcn-amd-amdhsa", "-mcpu=gfx950", "-c", tmp + ".s", "-o", tmp + ".o"], check=True)
    dis = subprocess.run(["llvm-objdump", "-d", "--mcpu=gfx950", tmp + ".o"], capture_output=True, text=True).stdout
    sz = [4*len(m.group(1).split()) for m in re.finditer(r"// [0-9A-F]+: ((?:[0-9A-F]{8} ?)+)", dis)]
    os.remove(tmp + ".s"); os.remove(tmp + ".o")
    it = iter(sz); out = [0 if (l.startswith(".") or l.endswith(":")) else next(it) for l in lines]
    assert next(it, None) is None
    return out

def add_pads(lines, start, stop, extra, name, back):
    sz = sizes_of(lines); out = lines[:start]; off = 0; pads = []; page = 0
    def pad():
        nonlocal off
        pads.append(len(out)); out.append(None); out.append(None); off += 4
    for k in range(start, len(lines)):
        l = lines[k]
        if l.startswith(".p2align"):
            a = 1 << int(l.split()[1])
            while off % a: out.append("s_nop 0"); off += 4
            continue
        out.append(l); off += sz[k]
        if k >= stop: continue
        if k <= back + 2: page = off // 4096; continue
        if l.endswith(":") and l[:-1] in extra: pad(); continue
        if off // 4096 > page and sz[k]:
            room = 60 - off % 4096; nxt = next((sz[j] for j in range(k+1, len(lines)) if sz[j]), 4)
            if l.startswith("v_mfma") or room < nxt:
                assert room >= 0; page = off // 4096; pad()
    for n, at in enumerate(pads):
        out[at] = f"{name}_pad{n}:"
        out[at+1] = f"s_cbranch_execz {name}_pad{n+8} ;@pad" if n+8 < len(pads) else f"s_cbranch_execz {lines[back][:-1]} ;@pad"
    return out, len(pads)
```
